```python
import torch

def _softmax(x, axis=-1):
    return torch.softmax(x, dim=axis)
def _gelu(x):
    return torch.nn.functional.gelu(x, approximate="tanh")
def _silu(x):
    return torch.nn.functional.silu(x)
def _sigmoid(x):
    return torch.sigmoid(x)
def _layernorm(x, axis=-1, eps=1e-5):
    m = x.mean(dim=axis, keepdim=True)
    v = x.var(dim=axis, keepdim=True, unbiased=False)
    return (x - m) / torch.sqrt(v + eps)
def _scatter_add(tgt, idx, src, axis=0):
    return tgt.clone().index_add_(axis, idx, src)
def _segment_sum(src, seg, n):
    out = torch.zeros((n,) + src.shape[1:], dtype=src.dtype)
    return out.index_add_(0, seg, src)
def _pad(x, pw):
    flat = tuple(v for pair in reversed(pw) for v in pair)
    return torch.nn.functional.pad(x, flat)

kernel_name = 'recurrent_scan__spectral_fnet__glu_gated_glu__prompt'

def setup_inputs():

    _w = (lambda a: (lambda t: t.to(torch.bfloat16) if t.is_floating_point() else t)(torch.as_tensor(a)))
    def _A_setup():
        B, S, D = 1, 2048, 576
        ns = torch.arange(S)[:, None] * torch.arange(S)[None, :]
        nd = torch.arange(D)[:, None] * torch.arange(D)[None, :]
        Ws_re = torch.cos(-2.0 * torch.pi * ns / S).to(float)
        Ws_im = torch.sin(-2.0 * torch.pi * ns / S).to(float)
        Wd_re = torch.cos(-2.0 * torch.pi * nd / D).to(float)
        Wd_im = torch.sin(-2.0 * torch.pi * nd / D).to(float)
        return {
            "x": _w((lambda *s: torch.randn(*s, dtype=torch.bfloat16) * 0.05)(B, S, D)),
            "dft_seq_re": _w(Ws_re),
            "dft_seq_im": _w(Ws_im),
            "dft_hid_re": _w(Wd_re),
            "dft_hid_im": _w(Wd_im),
        }
    _A_in = _A_setup()

    def _B_setup():
        B, S, D, F = 1, 2048, 576, 4608
        return {
            "x": _w((lambda *s: torch.randn(*s, dtype=torch.bfloat16) * 0.05)(B, S, D)),
            "w_gate": _w((lambda *s: torch.randn(*s, dtype=torch.bfloat16) * 0.05)(D, F)),
            "w_up": _w((lambda *s: torch.randn(*s, dtype=torch.bfloat16) * 0.05)(D, F)),
            "w_down": _w((lambda *s: torch.randn(*s, dtype=torch.bfloat16) * 0.05)(F, D)),
        }
    _B_in = _B_setup()

    return {
        "A_x": _A_in["x"],
        "A_dft_seq_re": _A_in["dft_seq_re"],
        "A_dft_seq_im": _A_in["dft_seq_im"],
        "A_dft_hid_re": _A_in["dft_hid_re"],
        "A_dft_hid_im": _A_in["dft_hid_im"],
        "B_x": _B_in["x"],
        "B_w_gate": _B_in["w_gate"],
        "B_w_up": _B_in["w_up"],
        "B_w_down": _B_in["w_down"],
    }

def reference(A_x, A_dft_seq_re, A_dft_seq_im, A_dft_hid_re, A_dft_hid_im, B_x, B_w_gate, B_w_up, B_w_down):
    def _A_ref(x, dft_seq_re, dft_seq_im, dft_hid_re, dft_hid_im):
        a = torch.einsum("bsd,ed->bse", x, dft_hid_re)
        b = torch.einsum("bsd,ed->bse", x, dft_hid_im)
        y = torch.einsum("ts,bse->bte", dft_seq_re, a) - torch.einsum("ts,bse->bte", dft_seq_im, b)
        return y

    def _B_ref(x, w_gate, w_up, w_down):
        g = torch.einsum("bsd,df->bsf", x, w_gate)
        u = torch.einsum("bsd,df->bsf", x, w_up)
        h = _sigmoid(g) * u
        return torch.einsum("bsf,fd->bsd", h, w_down)

    x = A_x
    xn = _layernorm(x, axis=-1)
    s = _A_ref(xn, A_dft_seq_re, A_dft_seq_im, A_dft_hid_re, A_dft_hid_im)
    g = _silu(_B_ref(xn, B_w_gate, B_w_up, B_w_down))
    return x + s * g
```

```python
import sys
NAME="recurrent_scan__spectral_fnet__glu_gated_glu__prompt"
L=[]
def e(s): L.append("    "+s)
def lab(s): L.append(s+":")
WS_XN=0; WS_ABT=0x300000; WS_H=0x800000; WS_Y1=0x1A00000; WS_Y2=0x1D00000; WS_O1=0x2000000; WS_O2=0x2480000
SZ_XN=2048*576*2; SZ_ABT=1152*2048*2; SZ_H=2048*4608*2; SZ_Y=2048*576*2; SZ_O=2048*576*4

def srd(d, lo, hi, nbytes, add=0):
    if add:
        e(f"s_add_u32 s{d}, s{lo}, 0x{add:x}")
        e(f"s_addc_u32 s{d+1}, s{hi}, 0")
    else:
        e(f"s_mov_b32 s{d}, s{lo}"); e(f"s_mov_b32 s{d+1}, s{hi}")
    e(f"s_mov_b32 s{d+2}, 0x{nbytes:x}")
    e(f"s_mov_b32 s{d+3}, 0x00020000")

def header(k):
    L.append(f".globl {k}"); L.append(".p2align 8"); L.append(f".type {k},@function"); lab(k)

def rnd_f32(dst, src, tmp):
    e(f"v_cvt_pk_bf16_f32 v{tmp}, v{src}, v{src}")
    e(f"v_lshlrev_b32 v{dst}, 16, v{tmp}")

def k0():
    header("ln_kernel")
    e("s_cmp_ge_u32 s2, 512"); e("s_cbranch_scc1 K0_END")
    e("s_load_dwordx2 s[4:5], s[0:1], 0"); e("s_load_dwordx2 s[6:7], s[0:1], 88")
    e("v_lshrrev_b32 v1, 6, v0")
    e("v_and_b32 v10, 63, v0")
    e("s_lshl_b32 s3, s2, 2")
    e("v_add_u32 v1, s3, v1")
    e("s_movk_i32 s3, 1152")
    e("v_mul_lo_u32 v1, v1, s3")
    e("v_lshlrev_b32 v11, 4, v10")
    e("v_add_u32 v1, v1, v11")
    e("s_waitcnt lgkmcnt(0)")
    srd(8,4,5,SZ_XN); srd(12,6,7,SZ_XN,WS_XN)
    e("v_mov_b32 v6, 0"); e("v_mov_b32 v7, 0"); e("v_mov_b32 v8, 0"); e("v_mov_b32 v9, 0")
    e("buffer_load_dwordx4 v[2:5], v1, s[8:11], 0 offen")
    e("v_cmp_gt_u32 vcc, 8, v10")
    e("s_and_saveexec_b64 s[16:17], vcc")
    e("buffer_load_dwordx4 v[6:9], v1, s[8:11], 0 offen offset:1024")
    e("s_mov_b64 exec, s[16:17]")
    e("s_waitcnt vmcnt(0)")
    for i in range(8):
        e(f"v_lshlrev_b32 v{20+2*i}, 16, v{2+i}")
        e(f"v_and_b32 v{21+2*i}, 0xffff0000, v{2+i}")
    e("v_add_f32 v12, v20, v21")
    for i in range(2,16): e(f"v_add_f32 v12, v12, v{20+i}")
    def wred(r):
        for x in (1,2,4,8,16,32):
            e(f"v_xor_b32 v13, {x}, v10"); e("v_lshlrev_b32 v13, 2, v13")
            e(f"ds_bpermute_b32 v14, v13, v{r}"); e("s_waitcnt lgkmcnt(0)")
            e(f"v_add_f32 v{r}, v{r}, v14")
    wred(12)
    e("s_mov_b32 s3, 0x3ae38e39")
    e("v_mul_f32 v12, s3, v12")
    e("v_mov_b32 v15, 0")
    for i in range(8):
        e(f"v_sub_f32 v16, v{20+i}, v12"); e("v_fmac_f32 v15, v16, v16")
    e("s_and_saveexec_b64 s[16:17], vcc")
    for i in range(8,16):
        e(f"v_sub_f32 v16, v{20+i}, v12"); e("v_fmac_f32 v15, v16, v16")
    e("s_mov_b64 exec, s[16:17]")
    wred(15)
    e("v_mul_f32 v15, s3, v15")
    rnd_f32(12,12,16)
    rnd_f32(15,15,16)
    e("v_add_f32 v15, 0x3727c5ac, v15")
    rnd_f32(15,15,16)
    e("v_sqrt_f32 v15, v15"); e("s_nop 0")
    rnd_f32(15,15,16)
    e("v_rcp_f32 v17, v15"); e("s_nop 0")
    for i in range(16):
        e(f"v_sub_f32 v{20+i}, v{20+i}, v12")
        rnd_f32(20+i,20+i,16)
        e(f"v_mul_f32 v18, v{20+i}, v17")
        e(f"v_fma_f32 v19, -v18, v15, v{20+i}")
        e(f"v_fma_f32 v{20+i}, v19, v17, v18")
    for i in range(8):
        e(f"v_cvt_pk_bf16_f32 v{2+i}, v{20+2*i}, v{21+2*i}")
    e("buffer_store_dwordx4 v[2:5], v1, s[12:15], 0 offen")
    e("s_and_saveexec_b64 s[16:17], vcc")
    e("buffer_store_dwordx4 v[6:9], v1, s[12:15], 0 offen offset:1024")
    e("s_mov_b64 exec, s[16:17]")
    lab("K0_END"); e("s_endpgm")

class Op:
    def __init__(s, kind, ldsoff, rows=None, rs=None, nunits=None, gstride=None, srd=None, sk=None):
        s.kind=kind; s.ldsoff=ldsoff; s.rows=rows; s.rs=rs; s.nunits=nunits; s.gstride=gstride; s.srd=srd; s.sk=sk
        s.bytes = rows*128 if kind=='kc' else 64*rs
        s.ndma = s.bytes//1024

class VA:
    def __init__(s, start): s.n=start
    def get(s,k=1,al=1):
        while s.n%al: s.n+=1
        r=s.n; s.n+=k; return r

def gemm_core(tag, ops, pside, qside, TP, TQ, wp_expr, wq_expr, nchunks, stage_bytes, va, sT, sCnt, unroll_all):
    acc={}
    for pi in pside:
        for a in range(TP):
            for b in range(TQ):
                acc[(pi,a,b)]=va.get(4,4)
    for r in range(min(acc.values()), max(acc.values())+4): e(f"v_mov_b32 v{r}, 0")
    fr={}
    for ks in range(2):
        for pi in pside:
            for a in range(TP): fr[(pi,a,ks)]=va.get(4,4)
        for b in range(TQ): fr[(qside,b,ks)]=va.get(4,4)
    ra={}
    for oi in pside+[qside]:
        op=ops[oi]; T = TQ if oi==qside else TP; wexp = wq_expr if oi==qside else wp_expr
        if op.kind=='kc':
            for ks in range(2):
                r=va.get(); ra[(oi,ks)]=r
                e(f"v_and_b32 v{r}, 15, v250")
                e(f"s_lshl_b32 s{sT}, s{wexp}, 4")
                e(f"v_add_u32 v{r}, s{sT}, v{r}")
                e(f"v_lshlrev_b32 v{r}, 7, v{r}")
                e(f"v_lshrrev_b32 v249, 4, v250")
                e(f"v_add_u32 v249, {ks*4}, v249")
                e(f"v_and_b32 v248, 7, v250")
                e(f"v_xor_b32 v249, v249, v248")
                e(f"v_lshlrev_b32 v249, 4, v249")
                e(f"v_add_u32 v{r}, v{r}, v249")
        else:
            for t in range(T):
                r=va.get(); ra[(oi,t)]=r
                e(f"v_lshrrev_b32 v249, 4, v250")
                e(f"v_bfe_u32 v248, v250, 2, 2")
                e(f"v_lshl_add_u32 v{r}, v249, 3, v248")
                e(f"s_movk_i32 s{sT}, {op.rs}")
                e(f"v_mul_lo_u32 v{r}, v{r}, s{sT}")
                e(f"v_and_b32 v249, 1, v249")
                e(f"v_lshl_or_b32 v248, v249, 2, v248")
                e(f"s_add_u32 s{sT}, s{wexp}, {t}")
                e(f"v_xor_b32 v248, s{sT}, v248")
                e(f"v_lshl_add_u32 v{r}, v248, 5, v{r}")
                e(f"v_and_b32 v248, 3, v250")
                e(f"v_lshl_add_u32 v{r}, v248, 3, v{r}")
    ra1={}
    for k_,r in list(ra.items()):
        r1=va.get(); ra1[k_]=r1
        e(f"v_add_u32 v{r1}, {stage_bytes}, v{r}")
    def dma(stage):
        for oi,op in enumerate(ops):
            for j in range(op.ndma):
                if j%4!=0: continue
                e(f"s_add_u32 m0, s{op.sldsw}, {stage*stage_bytes+op.ldsoff+j*1024}")
                if op.kind=='kc':
                    e(f"s_add_u32 s{sT}, s{op.sk}, {j*8*op.gstride}")
                    vb=op.vb[0]
                else:
                    e(f"s_add_u32 s{sT}, s{op.sk}, {j*(1024//op.rs)*op.gstride}")
                    vb=op.vb[op.varkey(j)]
                e(f"buffer_load_dwordx4 v{vb}, s[{op.srd}:{op.srd+3}], s{sT} offen lds")
    def adv():
        for op in ops:
            e(f"s_add_u32 s{op.sk}, s{op.sk}, {128 if op.kind=='kc' else 64*op.gstride}")
    def reads(stage,ks):
        for oi in [qside]+pside:
            op=ops[oi]; T = TQ if oi==qside else TP
            base=op.ldsoff
            R=ra1 if stage else ra
            for t in range(T):
                f=fr[(oi,t,ks)]
                if op.kind=='kc':
                    e(f"ds_read_b128 v[{f}:{f+3}], v{R[(oi,ks)]} offset:{base+t*2048}")
                else:
                    for h in range(2):
                        e(f"ds_read_b64_tr_b16 v[{f+2*h}:{f+2*h+1}], v{R[(oi,t)]} offset:{base+(ks*32+4*h)*op.rs}")
    def mfmas(ks):
        for pi in pside:
            for a in range(TP):
                for b in range(TQ):
                    c=acc[(pi,a,b)]; fa=fr[(pi,a,ks)]; fb=fr[(qside,b,ks)]
                    e(f"v_mfma_f32_16x16x32_bf16 v[{c}:{c+3}], v[{fa}:{fa+3}], v[{fb}:{fb+3}], v[{c}:{c+3}]")
    def body(stage, prefetch):
        if prefetch:
            adv(); dma(stage^1)
        reads(stage,0); e("s_waitcnt lgkmcnt(0)")
        reads(stage,1); mfmas(0); e("s_waitcnt lgkmcnt(0)"); mfmas(1)
        e("s_waitcnt vmcnt(0)"); e("s_barrier")
    dma(0); e("s_waitcnt vmcnt(0)"); e("s_barrier")
    if unroll_all:
        for i in range(nchunks): body(i%2, i<nchunks-1)
    else:
        lab(f"{tag}_LOOP")
        body(0,True); body(1,True)
        e(f"s_sub_u32 s{sCnt}, s{sCnt}, 1"); e(f"s_cmp_gt_u32 s{sCnt}, 1"); e(f"s_cbranch_scc1 {tag}_LOOP")
        body(0,True); body(1,False)
    e("s_nop 7"); e("s_nop 7")
    return acc

def setup_dma(op, va, sRow0, sT):
    op.vb={}
    if op.kind=='kc':
        r=va.get(); op.vb[0]=r
        e(f"v_lshrrev_b32 v249, 3, v250")
        e(f"v_lshl_add_u32 v{r}, v251, 3, v249")
        e(f"v_add_u32 v{r}, s{sRow0}, v{r}")
        e(f"s_mov_b32 s{sT}, {op.gstride}")
        e(f"v_mul_lo_u32 v{r}, v{r}, s{sT}")
        e(f"v_and_b32 v248, 7, v250")
        e(f"v_xor_b32 v248, v248, v249")
        e(f"v_lshl_add_u32 v{r}, v248, 4, v{r}")
    else:
        rpd=1024//op.rs
        cpr=op.rs//16
        if op.rs==256:
            op.varkey=lambda j: 0
            keys=[0]
        else:
            op.varkey=lambda j: (j>>2)&1
            keys=[0,1]
        for key in keys:
            r=va.get(); op.vb[key]=r
            e(f"v_lshrrev_b32 v249, {cpr.bit_length()-1}, v250")
            e(f"v_mul_u32_u24 v248, {rpd}, v251")
            e(f"v_add_u32 v249, v249, v248")
            if key: e(f"v_add_u32 v249, 8, v249")
            e(f"v_and_b32 v248, 3, v249")
            e(f"v_bfe_u32 v247, v249, 3, 1")
            e(f"v_lshl_or_b32 v248, v247, 2, v248")
            if key: e(f"v_subrev_u32 v249, 8, v249")
            e(f"v_bfe_u32 v247, v250, 1, {cpr.bit_length()-2}")
            e(f"v_xor_b32 v248, v247, v248")
            e(f"s_mov_b32 s{sT}, {op.gstride}")
            e(f"v_mul_lo_u32 v{r}, v249, s{sT}")
            e(f"v_lshl_add_u32 v{r}, v248, 5, v{r}")
            e(f"v_and_b32 v247, 1, v250")
            e(f"v_lshl_add_u32 v{r}, v247, 4, v{r}")
            e(f"s_lshl_b32 s{sT}, s{sRow0}, 1")
            e(f"v_add_u32 v{r}, s{sT}, v{r}")
            if op.nunits < cpr//2:
                e(f"v_cmp_gt_u32 vcc, {op.nunits}, v248")
                e(f"v_mov_b32 v247, 0x7ffffff0"); e("s_nop 1")
                e(f"v_cndmask_b32 v{r}, v247, v{r}, vcc")

def lane_setup():
    e("v_and_b32 v250, 63, v0"); e("v_lshrrev_b32 v251, 6, v0")
    e("s_nop 0"); e("v_readfirstlane_b32 s40, v251")
    e("s_lshl_b32 s41, s40, 10")

def sig_to(dst, src, t1):
    e(f"v_mul_f32 v{t1}, 0xbfb8aa3b, v{src}")
    e(f"v_exp_f32 v{t1}, v{t1}"); e("s_nop 0")
    e(f"v_add_f32 v{t1}, 1.0, v{t1}")
    e(f"v_rcp_f32 v{dst}, v{t1}"); e("s_nop 0")

def k1():
    header("stagea_kernel")
    e("s_cmp_ge_u32 s2, 672"); e("s_cbranch_scc1 K1_END")
    e("s_load_dwordx4 s[4:7], s[0:1], 24")
    e("s_load_dwordx4 s[8:11], s[0:1], 48")
    e("s_load_dwordx2 s[12:13], s[0:1], 88")
    lane_setup()
    e("s_lshr_b32 s42, s40, 1"); e("s_and_b32 s43, s40, 1")
    e("s_waitcnt lgkmcnt(0)")
    srd(16,12,13,SZ_XN,WS_XN)
    e("s_cmp_ge_u32 s2, 576"); e("s_cbranch_scc1 K1_DFT")
    e("s_lshr_b32 s44, s2, 4"); e("s_and_b32 s45, s2, 15")
    srd(20,8,9,576*4608*2); srd(24,10,11,576*4608*2); srd(28,12,13,SZ_H,WS_H)
    va=VA(0)
    oq=Op('kc',0,rows=128,gstride=1152,srd=16,sk=46)
    og=Op('tr',16384,rs=256,nunits=8,gstride=9216,srd=20,sk=47)
    ou=Op('tr',32768,rs=256,nunits=8,gstride=9216,srd=24,sk=48)
    for o in (oq,og,ou): o.sldsw=41; e(f"s_mov_b32 s{o.sk}, 0")
    e("s_lshl_b32 s50, s45, 7"); setup_dma(oq,va,50,51)
    e("s_lshl_b32 s52, s44, 7"); setup_dma(og,va,52,51)
    ou.vb=og.vb; ou.varkey=og.varkey
    e("s_lshl_b32 s53, s42, 2"); e("s_lshl_b32 s54, s43, 2")
    acc=gemm_core("G1",[oq,og,ou],[1,2],0,4,4,53,54,9,49152,va,51,None,True)
    t=132
    e("v_and_b32 v249, 15, v250")
    e("s_lshl_b32 s55, s45, 7"); e("s_lshl_b32 s56, s43, 6"); e("s_add_u32 s55, s55, s56")
    e(f"v_add_u32 v249, s55, v249")
    e("s_movk_i32 s56, 9216"); e("v_mul_lo_u32 v249, v249, s56")
    e("v_lshrrev_b32 v248, 4, v250"); e("v_lshlrev_b32 v248, 3, v248")
    e("v_add_u32 v249, v249, v248")
    e("s_lshl_b32 s55, s44, 8"); e("s_lshl_b32 s56, s42, 7"); e("s_add_u32 s55, s55, s56")
    e("v_add_u32 v249, s55, v249")
    for a in range(4):
        for b in range(4):
            g=acc[(1,a,b)]; u=acc[(2,a,b)]
            for r in range(4):
                rnd_f32(t+4,g+r,t+5); sig_to(t+4,t+4,t+5); rnd_f32(t+4,t+4,t+5)
                rnd_f32(t+6,u+r,t+5)
                e(f"v_mul_f32 v{t+8+r}, v{t+4}, v{t+6}")
            e(f"v_cvt_pk_bf16_f32 v{t}, v{t+8}, v{t+9}"); e(f"v_cvt_pk_bf16_f32 v{t+1}, v{t+10}, v{t+11}")
            e(f"s_mov_b32 s55, {b*16*9216}")
            e(f"buffer_store_dwordx2 v[{t}:{t+1}], v249, s[28:31], s55 offen offset:{a*32}")
            e("s_nop 1")
    e("s_branch K1_END")
    lab("K1_DFT")
    e("s_sub_u32 s44, s2, 576"); e("s_and_b32 s45, s44, 15"); e("s_lshr_b32 s44, s44, 4")
    e("s_cmp_ge_u32 s44, 3")
    e("s_cselect_b32 s20, s6, s4"); e("s_cselect_b32 s21, s7, s5")
    e("s_mov_b32 s22, 0x%x"%(576*576*2)); e("s_mov_b32 s23, 0x00020000")
    e("s_cselect_b32 s57, 3, 0"); e("s_sub_u32 s57, s44, s57")
    srd(28,12,13,SZ_ABT,WS_ABT)
    va=VA(0)
    op_=Op('kc',0,rows=128,gstride=1152,srd=16,sk=46)
    oq_=Op('kc',16384,rows=192,gstride=1152,srd=20,sk=47)
    for o in (op_,oq_): o.sldsw=41; e(f"s_mov_b32 s{o.sk}, 0")
    e("s_lshl_b32 s50, s45, 7"); setup_dma(op_,va,50,51)
    e("s_mul_i32 s52, s57, 192"); setup_dma(oq_,va,52,51)
    e("s_lshl_b32 s53, s42, 2"); e("s_mul_i32 s54, s43, 6")
    acc=gemm_core("G2",[op_,oq_],[0],1,4,6,53,54,9,40960,va,51,None,True)
    t=va.get(4,4)
    e("v_and_b32 v249, 15, v250")
    e("s_mul_i32 s55, s44, 192"); e("s_mul_i32 s56, s43, 96"); e("s_add_u32 s55, s55, s56")
    e("v_add_u32 v249, s55, v249"); e("v_lshlrev_b32 v249, 12, v249")
    e("v_lshrrev_b32 v248, 4, v250"); e("v_lshlrev_b32 v248, 3, v248"); e("v_add_u32 v249, v249, v248")
    e("s_lshl_b32 s55, s45, 8"); e("s_lshl_b32 s56, s42, 7"); e("s_add_u32 s55, s55, s56")
    e("v_add_u32 v249, s55, v249")
    for a in range(4):
        for b in range(6):
            c=acc[(0,a,b)]
            e(f"v_cvt_pk_bf16_f32 v{t}, v{c}, v{c+1}"); e(f"v_cvt_pk_bf16_f32 v{t+1}, v{c+2}, v{c+3}")
            e(f"s_mov_b32 s55, {b*16*4096}")
            e(f"buffer_store_dwordx2 v[{t}:{t+1}], v249, s[28:31], s55 offen offset:{a*32}")
            e("s_nop 1")
    lab("K1_END"); e("s_endpgm")

def k2():
    header("stageb_kernel")
    e("s_cmp_ge_u32 s2, 256"); e("s_cbranch_scc1 K2_END")
    e("s_load_dwordx4 s[4:7], s[0:1], 8")
    e("s_load_dwordx2 s[8:9], s[0:1], 64")
    e("s_load_dwordx2 s[12:13], s[0:1], 88")
    lane_setup()
    e("s_bfe_u32 s44, s2, 0x20003"); e("s_and_b32 s45, s2, 7"); e("s_lshr_b32 s46, s2, 5"); e("s_lshl_b32 s46, s46, 3")
    e("s_add_u32 s45, s45, s46"); e("s_lshr_b32 s47, s45, 4"); e("s_and_b32 s45, s45, 15")
    e("s_waitcnt lgkmcnt(0)")
    e("s_mov_b32 s53, 0"); e("s_lshl_b32 s54, s40, 1")
    e("s_cmp_ge_u32 s47, 2"); e("s_cbranch_scc1 K2_DOWN")
    e("s_cmp_eq_u32 s47, 1")
    e("s_cselect_b32 s16, s6, s4"); e("s_cselect_b32 s17, s7, s5"); e("s_mov_b32 s18, 0x800000"); e("s_mov_b32 s19, 0x00020000")
    srd(20,12,13,SZ_ABT,WS_ABT)
    e("s_cmp_eq_u32 s47, 1"); e("s_mov_b32 s56, 0x%x"%WS_Y1); e("s_cselect_b32 s57, 0x%x, s56"%WS_Y2)
    e("s_add_u32 s28, s12, s57"); e("s_addc_u32 s29, s13, 0"); e("s_mov_b32 s30, 0x%x"%SZ_Y); e("s_mov_b32 s31, 0x00020000")
    va=VA(0)
    oq=Op('kc',0,rows=128,gstride=4096,srd=16,sk=58)
    op_=Op('kc',16384,rows=144,gstride=4096,srd=20,sk=59)
    for o in (oq,op_): o.sldsw=41; e(f"s_mov_b32 s{o.sk}, 0")
    e("s_lshl_b32 s50, s45, 7"); setup_dma(oq,va,50,51)
    e("s_mul_i32 s52, s44, 144"); e("s_mul_i32 s56, s47, 576"); e("s_add_u32 s52, s52, s56"); setup_dma(op_,va,52,51)
    e("s_mov_b32 s60, 16")
    acc=gemm_core("G3",[oq,op_],[1],0,9,2,53,54,32,36864,va,51,60,False)
    t=va.get(4,4)
    def epi_addr(esz):
        e("v_and_b32 v249, 15, v250")
        e("s_lshl_b32 s55, s45, 7"); e("s_lshl_b32 s56, s40, 5"); e("s_add_u32 s55, s55, s56")
        e("v_add_u32 v249, s55, v249")
        e(f"s_movk_i32 s56, {576*esz}"); e("v_mul_lo_u32 v249, v249, s56")
        e("v_lshrrev_b32 v248, 4, v250"); e(f"v_lshlrev_b32 v248, {2+esz.bit_length()-1}, v248"); e("v_add_u32 v249, v249, v248")
        e(f"s_mul_i32 s55, s44, {144*esz}"); e("v_add_u32 v249, s55, v249")
    epi_addr(2)
    for a in range(9):
        for b in range(2):
            c=acc[(1,a,b)]
            e(f"v_cvt_pk_bf16_f32 v{t}, v{c}, v{c+1}"); e(f"v_cvt_pk_bf16_f32 v{t+1}, v{c+2}, v{c+3}")
            e(f"s_mov_b32 s55, {b*16*1152}")
            e(f"buffer_store_dwordx2 v[{t}:{t+1}], v249, s[28:31], s55 offen offset:{a*32}")
            e("s_nop 1")
    e("s_branch K2_END")
    lab("K2_DOWN")
    srd(16,12,13,SZ_H,WS_H)
    srd(20,8,9,4608*576*2)
    e("s_cmp_eq_u32 s47, 3")
    e("s_mov_b32 s56, 0x%x"%WS_O1); e("s_cselect_b32 s57, 0x%x, s56"%WS_O2)
    e("s_add_u32 s28, s12, s57"); e("s_addc_u32 s29, s13, 0"); e("s_mov_b32 s30, 0x%x"%SZ_O); e("s_mov_b32 s31, 0x00020000")
    va=VA(0)
    oq=Op('kc',0,rows=128,gstride=9216,srd=16,sk=58)
    op_=Op('tr',16384,rs=512,nunits=9,gstride=1152,srd=20,sk=59)
    for o in (oq,op_): o.sldsw=41
    e("s_sub_u32 s56, s47, 2"); e("s_mul_i32 s58, s56, 4608"); e("s_mul_i32 s59, s56, 2304*1152")
    e("s_lshl_b32 s50, s45, 7"); setup_dma(oq,va,50,51)
    e("s_mul_i32 s52, s44, 144"); setup_dma(op_,va,52,51)
    e("s_mov_b32 s60, 18")
    acc=gemm_core("G4",[oq,op_],[1],0,9,2,53,54,36,49152,va,51,60,False)
    epi_addr(4)
    for a in range(9):
        for b in range(2):
            c=acc[(1,a,b)]
            e(f"s_mov_b32 s55, {b*16*2304}")
            e(f"buffer_store_dwordx4 v[{c}:{c+3}], v249, s[28:31], s55 offen offset:{a*64}")
    lab("K2_END"); e("s_endpgm")

def k3():
    header("final_kernel")
    e("s_cmp_ge_u32 s2, 1152"); e("s_cbranch_scc1 K3_END")
    e("s_load_dwordx2 s[4:5], s[0:1], 0"); e("s_load_dwordx2 s[6:7], s[0:1], 72"); e("s_load_dwordx2 s[12:13], s[0:1], 88")
    e("s_lshl_b32 s3, s2, 8"); e("v_add_u32 v1, s3, v0"); e("v_lshlrev_b32 v2, 3, v1"); e("v_lshlrev_b32 v3, 4, v1")
    e("s_waitcnt lgkmcnt(0)")
    srd(16,4,5,SZ_Y); srd(20,6,7,SZ_Y); srd(24,12,13,SZ_Y,WS_Y1); srd(28,12,13,SZ_Y,WS_Y2); srd(32,12,13,SZ_O,WS_O1); srd(36,12,13,SZ_O,WS_O2)
    e("buffer_load_dwordx2 v[4:5], v2, s[16:19], 0 offen")
    e("buffer_load_dwordx2 v[6:7], v2, s[24:27], 0 offen")
    e("buffer_load_dwordx2 v[8:9], v2, s[28:31], 0 offen")
    e("buffer_load_dwordx4 v[12:15], v3, s[32:35], 0 offen")
    e("buffer_load_dwordx4 v[16:19], v3, s[36:39], 0 offen")
    e("s_waitcnt vmcnt(0)")
    for r in range(4):
        sh = "v_lshlrev_b32 v{d}, 16, v{s}" if r%2==0 else "v_and_b32 v{d}, 0xffff0000, v{s}"
        e(sh.format(d=20,s=4+r//2)); e(sh.format(d=21,s=6+r//2)); e(sh.format(d=22,s=8+r//2))
        e("v_sub_f32 v21, v21, v22"); rnd_f32(21,21,23)
        e(f"v_add_f32 v22, v{12+r}, v{16+r}"); rnd_f32(22,22,23)
        sig_to(24,22,23); e("v_mul_f32 v22, v22, v24"); rnd_f32(22,22,23)
        e("v_mul_f32 v21, v21, v22"); rnd_f32(21,21,23)
        e(f"v_add_f32 v{26+r}, v20, v21")
    e("v_cvt_pk_bf16_f32 v30, v26, v27"); e("v_cvt_pk_bf16_f32 v31, v28, v29")
    e("buffer_store_dwordx2 v[30:31], v2, s[20:23], 0 offen")
    lab("K3_END"); e("s_endpgm")

def kd(k, vg):
    return f""".section .rodata,"a"
.p2align 6
.amdhsa_kernel {k}
  .amdhsa_next_free_vgpr {vg}
  .amdhsa_next_free_sgpr 102
  .amdhsa_accum_offset {vg}
  .amdhsa_group_segment_fixed_size 0
  .amdhsa_kernarg_size 96
  .amdhsa_user_sgpr_count 2
  .amdhsa_user_sgpr_kernarg_segment_ptr 1
  .amdhsa_system_sgpr_workgroup_id_x 1
.end_amdhsa_kernel"""

hdr=open(f"cdna_kernels/{NAME}.s.ref").read().split("; Override launch")[0]
out=[hdr.rstrip(),
 "; @launch kernel=ln_kernel grid=(512,1,1) block=(256,1,1) lds=0",
 "; @launch kernel=stagea_kernel grid=(672,1,1) block=(256,1,1) lds=98304",
 "; @launch kernel=stageb_kernel grid=(256,1,1) block=(256,1,1) lds=98304",
 "; @launch kernel=final_kernel grid=(1152,1,1) block=(256,1,1) lds=0",
 '.amdgcn_target "amdgcn-amd-amdhsa--gfx950"', ".text"]
k0(); k1(); k2(); k3()
out+=L
out+=[kd("ln_kernel",64),kd("stagea_kernel",256),kd("stageb_kernel",256),kd("final_kernel",64)]
open(f"cdna_kernels/{NAME}.s","w").write("\n".join(out)+"\n")
```

```python
import sys
NAME="recurrent_scan__spectral_fnet__glu_gated_glu__prompt"
L=[]
def e(s): L.append("    "+s)
def lab(s): L.append(s+":")
WS_XN=0; WS_ABT=0x300000; WS_H=0x800000; WS_Y1=0x1A00000; WS_Y2=0x1D00000; WS_O1=0x2000000; WS_O2=0x2480000
SZ_XN=2048*576*2; SZ_ABT=1152*2048*2; SZ_H=2048*4608*2; SZ_Y=2048*576*2; SZ_O=2048*576*4

def srd(d, lo, hi, nbytes, add=0):
    if add:
        e(f"s_add_u32 s{d}, s{lo}, 0x{add:x}")
        e(f"s_addc_u32 s{d+1}, s{hi}, 0")
    else:
        e(f"s_mov_b32 s{d}, s{lo}"); e(f"s_mov_b32 s{d+1}, s{hi}")
    e(f"s_mov_b32 s{d+2}, 0x{nbytes:x}")
    e(f"s_mov_b32 s{d+3}, 0x00020000")

def header(k):
    L.append(f".globl {k}"); L.append(".p2align 8"); L.append(f".type {k},@function"); lab(k)

def rnd_f32(dst, src, tmp):
    e(f"v_cvt_pk_bf16_f32 v{tmp}, v{src}, v{src}")
    e(f"v_lshlrev_b32 v{dst}, 16, v{tmp}")

def k0():
    header("ln_kernel")
    e("s_cmp_ge_u32 s2, 512"); e("s_cbranch_scc1 K0_END")
    e("s_load_dwordx2 s[4:5], s[0:1], 0"); e("s_load_dwordx2 s[6:7], s[0:1], 88")
    e("v_lshrrev_b32 v1, 6, v0")
    e("v_and_b32 v10, 63, v0")
    e("s_lshl_b32 s3, s2, 2")
    e("v_add_u32 v1, s3, v1")
    e("s_movk_i32 s3, 1152")
    e("v_mul_lo_u32 v1, v1, s3")
    e("v_lshlrev_b32 v11, 4, v10")
    e("v_add_u32 v1, v1, v11")
    e("s_waitcnt lgkmcnt(0)")
    srd(8,4,5,SZ_XN); srd(12,6,7,SZ_XN,WS_XN)
    e("v_mov_b32 v6, 0"); e("v_mov_b32 v7, 0"); e("v_mov_b32 v8, 0"); e("v_mov_b32 v9, 0")
    e("buffer_load_dwordx4 v[2:5], v1, s[8:11], 0 offen")
    e("v_cmp_gt_u32 vcc, 8, v10")
    e("s_and_saveexec_b64 s[16:17], vcc")
    e("buffer_load_dwordx4 v[6:9], v1, s[8:11], 0 offen offset:1024")
    e("s_mov_b64 exec, s[16:17]")
    e("s_waitcnt vmcnt(0)")
    for i in range(8):
        e(f"v_lshlrev_b32 v{20+2*i}, 16, v{2+i}")
        e(f"v_and_b32 v{21+2*i}, 0xffff0000, v{2+i}")
    e("v_add_f32 v12, v20, v21")
    for i in range(2,16): e(f"v_add_f32 v12, v12, v{20+i}")
    def wred(r):
        for x in (1,2,4,8,16,32):
            e(f"v_xor_b32 v13, {x}, v10"); e("v_lshlrev_b32 v13, 2, v13")
            e(f"ds_bpermute_b32 v14, v13, v{r}"); e("s_waitcnt lgkmcnt(0)")
            e(f"v_add_f32 v{r}, v{r}, v14")
    wred(12)
    e("s_mov_b32 s3, 0x3ae38e39")
    e("v_mul_f32 v12, s3, v12")
    e("v_mov_b32 v15, 0")
    for i in range(8):
        e(f"v_sub_f32 v16, v{20+i}, v12"); e("v_fmac_f32 v15, v16, v16")
    e("s_and_saveexec_b64 s[16:17], vcc")
    for i in range(8,16):
        e(f"v_sub_f32 v16, v{20+i}, v12"); e("v_fmac_f32 v15, v16, v16")
    e("s_mov_b64 exec, s[16:17]")
    wred(15)
    e("v_mul_f32 v15, s3, v15")
    rnd_f32(12,12,16)
    rnd_f32(15,15,16)
    e("v_add_f32 v15, 0x3727c5ac, v15")
    rnd_f32(15,15,16)
    e("v_sqrt_f32 v15, v15"); e("s_nop 0")
    rnd_f32(15,15,16)
    e("v_rcp_f32 v17, v15"); e("s_nop 0")
    for i in range(16):
        e(f"v_sub_f32 v{20+i}, v{20+i}, v12")
        rnd_f32(20+i,20+i,16)
        e(f"v_mul_f32 v18, v{20+i}, v17")
        e(f"v_fma_f32 v19, -v18, v15, v{20+i}")
        e(f"v_fma_f32 v{20+i}, v19, v17, v18")
    for i in range(8):
        e(f"v_cvt_pk_bf16_f32 v{2+i}, v{20+2*i}, v{21+2*i}")
    e("buffer_store_dwordx4 v[2:5], v1, s[12:15], 0 offen")
    e("s_and_saveexec_b64 s[16:17], vcc")
    e("buffer_store_dwordx4 v[6:9], v1, s[12:15], 0 offen offset:1024")
    e("s_mov_b64 exec, s[16:17]")
    lab("K0_END"); e("s_endpgm")

class Op:
    def __init__(s, kind, ldsoff, rows=None, rs=None, nunits=None, gstride=None, srd=None, sk=None):
        s.kind=kind; s.ldsoff=ldsoff; s.rows=rows; s.rs=rs; s.nunits=nunits; s.gstride=gstride; s.srd=srd; s.sk=sk
        s.bytes = rows*128 if kind=='kc' else 64*rs
        s.ndma = s.bytes//1024

class VA:
    def __init__(s, start): s.n=start
    def get(s,k=1,al=1):
        while s.n%al: s.n+=1
        r=s.n; s.n+=k; return r

def gemm_core(tag, ops, pside, qside, TP, TQ, wp_expr, wq_expr, nchunks, stage_bytes, va, sT, sCnt, unroll_all):
    acc={}
    for pi in pside:
        for a in range(TP):
            for b in range(TQ):
                acc[(pi,a,b)]=va.get(4,4)
    for r in range(min(acc.values()), max(acc.values())+4): e(f"v_mov_b32 v{r}, 0")
    fr={}
    for ks in range(2):
        for pi in pside:
            for a in range(TP): fr[(pi,a,ks)]=va.get(4,4)
        for b in range(TQ): fr[(qside,b,ks)]=va.get(4,4)
    ra={}
    for oi in pside+[qside]:
        op=ops[oi]; T = TQ if oi==qside else TP; wexp = wq_expr if oi==qside else wp_expr
        if op.kind=='kc':
            for ks in range(2):
                r=va.get(); ra[(oi,ks)]=r
                e(f"v_and_b32 v{r}, 15, v250")
                e(f"s_lshl_b32 s{sT}, s{wexp}, 4")
                e(f"v_add_u32 v{r}, s{sT}, v{r}")
                e(f"v_lshlrev_b32 v{r}, 7, v{r}")
                e(f"v_lshrrev_b32 v249, 4, v250")
                e(f"v_add_u32 v249, {ks*4}, v249")
                e(f"v_and_b32 v248, 7, v250")
                e(f"v_xor_b32 v249, v249, v248")
                e(f"v_lshlrev_b32 v249, 4, v249")
                e(f"v_add_u32 v{r}, v{r}, v249")
        else:
            for t in range(T):
                r=va.get(); ra[(oi,t)]=r
                e(f"v_lshrrev_b32 v249, 4, v250")
                e(f"v_bfe_u32 v248, v250, 2, 2")
                e(f"v_lshl_add_u32 v{r}, v249, 3, v248")
                e(f"s_movk_i32 s{sT}, {op.rs}")
                e(f"v_mul_lo_u32 v{r}, v{r}, s{sT}")
                e(f"v_and_b32 v249, 1, v249")
                e(f"v_lshl_or_b32 v248, v249, 2, v248")
                e(f"s_add_u32 s{sT}, s{wexp}, {t}")
                e(f"v_xor_b32 v248, s{sT}, v248")
                e(f"v_lshl_add_u32 v{r}, v248, 5, v{r}")
                e(f"v_and_b32 v248, 3, v250")
                e(f"v_lshl_add_u32 v{r}, v248, 3, v{r}")
    RS=[ra,ra,ra]
    def dma(stage):
        out=[]
        for oi,op in enumerate(ops):
            for j in range(0,op.ndma,4):
                g=[f"s_add_u32 m0, s{op.sldsw}, {stage*stage_bytes+op.ldsoff+j*1024}"]
                if op.kind=='kc':
                    g.append(f"s_add_u32 s{sT}, s{op.sk}, {j*8*op.gstride}"); vb=op.vb[0]
                else:
                    g.append(f"s_add_u32 s{sT}, s{op.sk}, {j*(1024//op.rs)*op.gstride}"); vb=op.vb[op.varkey(j)]
                g.append(f"buffer_load_dwordx4 v{vb}, s[{op.srd}:{op.srd+3}], s{sT} offen lds")
                out.append(g)
        return out
    def adv():
        return [[f"s_add_u32 s{op.sk}, s{op.sk}, {128 if op.kind=='kc' else 64*op.gstride}" for op in ops]]
    def reads(stage,ks):
        out=[]; R=RS[stage]
        for oi in [qside]+pside:
            op=ops[oi]; T = TQ if oi==qside else TP
            base=op.ldsoff
            for t in range(T):
                f=fr[(oi,t,ks)]
                if op.kind=='kc':
                    out.append([f"ds_read_b128 v[{f}:{f+3}], v{R[(oi,ks)]} offset:{base+t*2048}"])
                else:
                    for h in range(2):
                        out.append([f"ds_read_b64_tr_b16 v[{f+2*h}:{f+2*h+1}], v{R[(oi,t)]} offset:{base+(ks*32+4*h)*op.rs}"])
        return out
    def mfmas(ks, fill):
        ms=[]
        for pi in pside:
            for a_ in range(TP):
                for b_ in range(TQ):
                    c=acc[(pi,a_,b_)]; fa=fr[(pi,a_,ks)]; fb=fr[(qside,b_,ks)]
                    ms.append(f"v_mfma_f32_16x16x32_bf16 v[{c}:{c+3}], v[{fa}:{fa+3}], v[{fb}:{fb+3}], v[{c}:{c+3}]")
        n=len(ms); done=0
        for i,m in enumerate(ms):
            e(m)
            want=(len(fill)*(i+1))//n
            while done<want:
                for x in fill[done]: e(x)
                done+=1
    def flat(gs):
        for g in gs:
            for x in g: e(x)
    nd=len(dma(0))
    flat(dma(0)); flat(adv()); flat(dma(1))
    e(f"s_waitcnt vmcnt({nd})"); e("s_barrier")
    for i in range(nchunks):
        st=i%3
        pf = i+2<nchunks
        d = adv()+dma((i+2)%3) if pf else []
        if i>0:
            for r in ra.values():
                if st: e(f"v_add_u32 v{r}, {stage_bytes}, v{r}")
                else: e(f"v_subrev_u32 v{r}, {2*stage_bytes}, v{r}")
        flat(reads(st,0)); e("s_waitcnt lgkmcnt(0)")
        h=len(d)//2
        mfmas(0, reads(st,1)+d[:h]); e("s_waitcnt lgkmcnt(0)"); mfmas(1, d[h:])
        e(f"s_waitcnt vmcnt({nd if pf else 0})"); e("s_barrier")
    e("s_nop 7"); e("s_nop 7")
    return acc

def setup_dma(op, va, sRow0, sT):
    op.vb={}
    if op.kind=='kc':
        r=va.get(); op.vb[0]=r
        e(f"v_lshrrev_b32 v249, 3, v250")
        e(f"v_lshl_add_u32 v{r}, v251, 3, v249")
        e(f"v_add_u32 v{r}, s{sRow0}, v{r}")
        e(f"s_mov_b32 s{sT}, {op.gstride}")
        e(f"v_mul_lo_u32 v{r}, v{r}, s{sT}")
        e(f"v_and_b32 v248, 7, v250")
        e(f"v_xor_b32 v248, v248, v249")
        e(f"v_lshl_add_u32 v{r}, v248, 4, v{r}")
    else:
        rpd=1024//op.rs
        cpr=op.rs//16
        if op.rs==256:
            op.varkey=lambda j: 0
            keys=[0]
        else:
            op.varkey=lambda j: (j>>2)&1
            keys=[0,1]
        for key in keys:
            r=va.get(); op.vb[key]=r
            e(f"v_lshrrev_b32 v249, {cpr.bit_length()-1}, v250")
            e(f"v_mul_u32_u24 v248, {rpd}, v251")
            e(f"v_add_u32 v249, v249, v248")
            if key: e(f"v_add_u32 v249, 8, v249")
            e(f"v_and_b32 v248, 3, v249")
            e(f"v_bfe_u32 v247, v249, 3, 1")
            e(f"v_lshl_or_b32 v248, v247, 2, v248")
            if key: e(f"v_subrev_u32 v249, 8, v249")
            e(f"v_bfe_u32 v247, v250, 1, {cpr.bit_length()-2}")
            e(f"v_xor_b32 v248, v247, v248")
            e(f"s_mov_b32 s{sT}, {op.gstride}")
            e(f"v_mul_lo_u32 v{r}, v249, s{sT}")
            e(f"v_lshl_add_u32 v{r}, v248, 5, v{r}")
            e(f"v_and_b32 v247, 1, v250")
            e(f"v_lshl_add_u32 v{r}, v247, 4, v{r}")
            e(f"s_lshl_b32 s{sT}, s{sRow0}, 1")
            e(f"v_add_u32 v{r}, s{sT}, v{r}")
            if op.nunits < cpr//2:
                e(f"v_cmp_gt_u32 vcc, {op.nunits}, v248")
                e(f"v_mov_b32 v247, 0x7ffffff0"); e("s_nop 1")
                e(f"v_cndmask_b32 v{r}, v247, v{r}, vcc")

def lane_setup():
    e("v_and_b32 v250, 63, v0"); e("v_lshrrev_b32 v251, 6, v0")
    e("s_nop 0"); e("v_readfirstlane_b32 s40, v251")
    e("s_lshl_b32 s41, s40, 10")

def sig_to(dst, src, t1):
    e(f"v_mul_f32 v{t1}, 0xbfb8aa3b, v{src}")
    e(f"v_exp_f32 v{t1}, v{t1}"); e("s_nop 0")
    e(f"v_add_f32 v{t1}, 1.0, v{t1}")
    e(f"v_rcp_f32 v{dst}, v{t1}"); e("s_nop 0")

def k1():
    header("stagea_kernel")
    e("s_cmp_ge_u32 s2, 672"); e("s_cbranch_scc1 K1_END")
    e("s_load_dwordx4 s[4:7], s[0:1], 24")
    e("s_load_dwordx4 s[8:11], s[0:1], 48")
    e("s_load_dwordx2 s[12:13], s[0:1], 88")
    lane_setup()
    e("s_lshr_b32 s42, s40, 1"); e("s_and_b32 s43, s40, 1")
    e("s_waitcnt lgkmcnt(0)")
    srd(16,12,13,SZ_XN,WS_XN)
    e("s_cmp_ge_u32 s2, 576"); e("s_cbranch_scc1 K1_DFT")
    e("s_lshr_b32 s44, s2, 4"); e("s_and_b32 s45, s2, 15")
    srd(20,8,9,576*4608*2); srd(24,10,11,576*4608*2); srd(28,12,13,SZ_H,WS_H)
    va=VA(0)
    oq=Op('kc',0,rows=128,gstride=1152,srd=16,sk=46)
    og=Op('tr',16384,rs=256,nunits=8,gstride=9216,srd=20,sk=47)
    ou=Op('tr',32768,rs=256,nunits=8,gstride=9216,srd=24,sk=48)
    for o in (oq,og,ou): o.sldsw=41; e(f"s_mov_b32 s{o.sk}, 0")
    e("s_lshl_b32 s50, s45, 7"); setup_dma(oq,va,50,51)
    e("s_lshl_b32 s52, s44, 7"); setup_dma(og,va,52,51)
    ou.vb=og.vb; ou.varkey=og.varkey
    e("s_lshl_b32 s53, s42, 2"); e("s_lshl_b32 s54, s43, 2")
    acc=gemm_core("G1",[oq,og,ou],[1,2],0,4,4,53,54,9,49152,va,51,None,True)
    t=132
    e("v_and_b32 v249, 15, v250")
    e("s_lshl_b32 s55, s45, 7"); e("s_lshl_b32 s56, s43, 6"); e("s_add_u32 s55, s55, s56")
    e(f"v_add_u32 v249, s55, v249")
    e("s_movk_i32 s56, 9216"); e("v_mul_lo_u32 v249, v249, s56")
    e("v_lshrrev_b32 v248, 4, v250"); e("v_lshlrev_b32 v248, 3, v248")
    e("v_add_u32 v249, v249, v248")
    e("s_lshl_b32 s55, s44, 8"); e("s_lshl_b32 s56, s42, 7"); e("s_add_u32 s55, s55, s56")
    e("v_add_u32 v249, s55, v249")
    for a in range(4):
        for b in range(4):
            g=acc[(1,a,b)]; u=acc[(2,a,b)]
            for r in range(4):
                rnd_f32(t+4,g+r,t+5); sig_to(t+4,t+4,t+5); rnd_f32(t+4,t+4,t+5)
                rnd_f32(t+6,u+r,t+5)
                e(f"v_mul_f32 v{t+8+r}, v{t+4}, v{t+6}")
            e(f"v_cvt_pk_bf16_f32 v{t}, v{t+8}, v{t+9}"); e(f"v_cvt_pk_bf16_f32 v{t+1}, v{t+10}, v{t+11}")
            e(f"s_mov_b32 s55, {b*16*9216}")
            e(f"buffer_store_dwordx2 v[{t}:{t+1}], v249, s[28:31], s55 offen offset:{a*32}")
            e("s_nop 1")
    e("s_branch K1_END")
    lab("K1_DFT")
    e("s_sub_u32 s44, s2, 576"); e("s_and_b32 s45, s44, 15"); e("s_lshr_b32 s44, s44, 4")
    e("s_cmp_ge_u32 s44, 3")
    e("s_cselect_b32 s20, s6, s4"); e("s_cselect_b32 s21, s7, s5")
    e("s_mov_b32 s22, 0x%x"%(576*576*2)); e("s_mov_b32 s23, 0x00020000")
    e("s_cselect_b32 s57, 3, 0"); e("s_sub_u32 s57, s44, s57")
    srd(28,12,13,SZ_ABT,WS_ABT)
    va=VA(0)
    op_=Op('kc',0,rows=128,gstride=1152,srd=16,sk=46)
    oq_=Op('kc',16384,rows=192,gstride=1152,srd=20,sk=47)
    for o in (op_,oq_): o.sldsw=41; e(f"s_mov_b32 s{o.sk}, 0")
    e("s_lshl_b32 s50, s45, 7"); setup_dma(op_,va,50,51)
    e("s_mul_i32 s52, s57, 192"); setup_dma(oq_,va,52,51)
    e("s_lshl_b32 s53, s42, 2"); e("s_mul_i32 s54, s43, 6")
    acc=gemm_core("G2",[op_,oq_],[0],1,4,6,53,54,9,40960,va,51,None,True)
    t=va.get(4,4)
    e("v_and_b32 v249, 15, v250")
    e("s_mul_i32 s55, s44, 192"); e("s_mul_i32 s56, s43, 96"); e("s_add_u32 s55, s55, s56")
    e("v_add_u32 v249, s55, v249"); e("v_lshlrev_b32 v249, 12, v249")
    e("v_lshrrev_b32 v248, 4, v250"); e("v_lshlrev_b32 v248, 3, v248"); e("v_add_u32 v249, v249, v248")
    e("s_lshl_b32 s55, s45, 8"); e("s_lshl_b32 s56, s42, 7"); e("s_add_u32 s55, s55, s56")
    e("v_add_u32 v249, s55, v249")
    for a in range(4):
        for b in range(6):
            c=acc[(0,a,b)]
            e(f"v_cvt_pk_bf16_f32 v{t}, v{c}, v{c+1}"); e(f"v_cvt_pk_bf16_f32 v{t+1}, v{c+2}, v{c+3}")
            e(f"s_mov_b32 s55, {b*16*4096}")
            e(f"buffer_store_dwordx2 v[{t}:{t+1}], v249, s[28:31], s55 offen offset:{a*32}")
            e("s_nop 1")
    lab("K1_END"); e("s_endpgm")

def k2():
    header("stageb_kernel")
    e("s_cmp_ge_u32 s2, 256"); e("s_cbranch_scc1 K2_END")
    e("s_load_dwordx4 s[4:7], s[0:1], 8")
    e("s_load_dwordx2 s[8:9], s[0:1], 64")
    e("s_load_dwordx2 s[12:13], s[0:1], 88")
    lane_setup()
    e("s_bfe_u32 s44, s2, 0x20003"); e("s_and_b32 s45, s2, 7"); e("s_lshr_b32 s46, s2, 5"); e("s_lshl_b32 s46, s46, 3")
    e("s_add_u32 s45, s45, s46"); e("s_lshr_b32 s47, s45, 4"); e("s_and_b32 s45, s45, 15")
    e("s_waitcnt lgkmcnt(0)")
    e("s_mov_b32 s53, 0"); e("s_lshl_b32 s54, s40, 1")
    e("s_cmp_ge_u32 s47, 2"); e("s_cbranch_scc1 K2_DOWN")
    e("s_cmp_eq_u32 s47, 1")
    e("s_cselect_b32 s16, s6, s4"); e("s_cselect_b32 s17, s7, s5"); e("s_mov_b32 s18, 0x800000"); e("s_mov_b32 s19, 0x00020000")
    srd(20,12,13,SZ_ABT,WS_ABT)
    e("s_cmp_eq_u32 s47, 1"); e("s_mov_b32 s56, 0x%x"%WS_Y1); e("s_cselect_b32 s57, 0x%x, s56"%WS_Y2)
    e("s_add_u32 s28, s12, s57"); e("s_addc_u32 s29, s13, 0"); e("s_mov_b32 s30, 0x%x"%SZ_Y); e("s_mov_b32 s31, 0x00020000")
    va=VA(0)
    oq=Op('kc',0,rows=128,gstride=4096,srd=16,sk=58)
    op_=Op('kc',16384,rows=144,gstride=4096,srd=20,sk=59)
    for o in (oq,op_): o.sldsw=41; e(f"s_mov_b32 s{o.sk}, 0")
    e("s_lshl_b32 s50, s45, 7"); setup_dma(oq,va,50,51)
    e("s_mul_i32 s52, s44, 144"); e("s_mul_i32 s56, s47, 576"); e("s_add_u32 s52, s52, s56"); setup_dma(op_,va,52,51)
    e("s_mov_b32 s60, 16")
    acc=gemm_core("G3",[oq,op_],[1],0,9,2,53,54,32,36864,va,51,60,False)
    t=va.get(4,4)
    def epi_addr(esz):
        e("v_and_b32 v249, 15, v250")
        e("s_lshl_b32 s55, s45, 7"); e("s_lshl_b32 s56, s40, 5"); e("s_add_u32 s55, s55, s56")
        e("v_add_u32 v249, s55, v249")
        e(f"s_movk_i32 s56, {576*esz}"); e("v_mul_lo_u32 v249, v249, s56")
        e("v_lshrrev_b32 v248, 4, v250"); e(f"v_lshlrev_b32 v248, {2+esz.bit_length()-1}, v248"); e("v_add_u32 v249, v249, v248")
        e(f"s_mul_i32 s55, s44, {144*esz}"); e("v_add_u32 v249, s55, v249")
    epi_addr(2)
    for a in range(9):
        for b in range(2):
            c=acc[(1,a,b)]
            e(f"v_cvt_pk_bf16_f32 v{t}, v{c}, v{c+1}"); e(f"v_cvt_pk_bf16_f32 v{t+1}, v{c+2}, v{c+3}")
            e(f"s_mov_b32 s55, {b*16*1152}")
            e(f"buffer_store_dwordx2 v[{t}:{t+1}], v249, s[28:31], s55 offen offset:{a*32}")
            e("s_nop 1")
    e("s_branch K2_END")
    lab("K2_DOWN")
    srd(16,12,13,SZ_H,WS_H)
    srd(20,8,9,4608*576*2)
    e("s_cmp_eq_u32 s47, 3")
    e("s_mov_b32 s56, 0x%x"%WS_O1); e("s_cselect_b32 s57, 0x%x, s56"%WS_O2)
    e("s_add_u32 s28, s12, s57"); e("s_addc_u32 s29, s13, 0"); e("s_mov_b32 s30, 0x%x"%SZ_O); e("s_mov_b32 s31, 0x00020000")
    va=VA(0)
    oq=Op('kc',0,rows=128,gstride=9216,srd=16,sk=58)
    op_=Op('tr',16384,rs=512,nunits=9,gstride=1152,srd=20,sk=59)
    for o in (oq,op_): o.sldsw=41
    e("s_sub_u32 s56, s47, 2"); e("s_mul_i32 s58, s56, 4608"); e("s_mul_i32 s59, s56, 2304*1152")
    e("s_lshl_b32 s50, s45, 7"); setup_dma(oq,va,50,51)
    e("s_mul_i32 s52, s44, 144"); setup_dma(op_,va,52,51)
    e("s_mov_b32 s60, 18")
    acc=gemm_core("G4",[oq,op_],[1],0,9,2,53,54,36,49152,va,51,60,False)
    epi_addr(4)
    for a in range(9):
        for b in range(2):
            c=acc[(1,a,b)]
            e(f"s_mov_b32 s55, {b*16*2304}")
            e(f"buffer_store_dwordx4 v[{c}:{c+3}], v249, s[28:31], s55 offen offset:{a*64}")
    lab("K2_END"); e("s_endpgm")

def k3():
    header("final_kernel")
    e("s_cmp_ge_u32 s2, 1152"); e("s_cbranch_scc1 K3_END")
    e("s_load_dwordx2 s[4:5], s[0:1], 0"); e("s_load_dwordx2 s[6:7], s[0:1], 72"); e("s_load_dwordx2 s[12:13], s[0:1], 88")
    e("s_lshl_b32 s3, s2, 8"); e("v_add_u32 v1, s3, v0"); e("v_lshlrev_b32 v2, 3, v1"); e("v_lshlrev_b32 v3, 4, v1")
    e("s_waitcnt lgkmcnt(0)")
    srd(16,4,5,SZ_Y); srd(20,6,7,SZ_Y); srd(24,12,13,SZ_Y,WS_Y1); srd(28,12,13,SZ_Y,WS_Y2); srd(32,12,13,SZ_O,WS_O1); srd(36,12,13,SZ_O,WS_O2)
    e("buffer_load_dwordx2 v[4:5], v2, s[16:19], 0 offen")
    e("buffer_load_dwordx2 v[6:7], v2, s[24:27], 0 offen")
    e("buffer_load_dwordx2 v[8:9], v2, s[28:31], 0 offen")
    e("buffer_load_dwordx4 v[12:15], v3, s[32:35], 0 offen")
    e("buffer_load_dwordx4 v[16:19], v3, s[36:39], 0 offen")
    e("s_waitcnt vmcnt(0)")
    for r in range(4):
        sh = "v_lshlrev_b32 v{d}, 16, v{s}" if r%2==0 else "v_and_b32 v{d}, 0xffff0000, v{s}"
        e(sh.format(d=20,s=4+r//2)); e(sh.format(d=21,s=6+r//2)); e(sh.format(d=22,s=8+r//2))
        e("v_sub_f32 v21, v21, v22"); rnd_f32(21,21,23)
        e(f"v_add_f32 v22, v{12+r}, v{16+r}"); rnd_f32(22,22,23)
        sig_to(24,22,23); e("v_mul_f32 v22, v22, v24"); rnd_f32(22,22,23)
        e("v_mul_f32 v21, v21, v22"); rnd_f32(21,21,23)
        e(f"v_add_f32 v{26+r}, v20, v21")
    e("v_cvt_pk_bf16_f32 v30, v26, v27"); e("v_cvt_pk_bf16_f32 v31, v28, v29")
    e("buffer_store_dwordx2 v[30:31], v2, s[20:23], 0 offen")
    lab("K3_END"); e("s_endpgm")

def kd(k, vg):
    return f""".section .rodata,"a"
.p2align 6
.amdhsa_kernel {k}
  .amdhsa_next_free_vgpr {vg}
  .amdhsa_next_free_sgpr 102
  .amdhsa_accum_offset {vg}
  .amdhsa_group_segment_fixed_size 0
  .amdhsa_kernarg_size 96
  .amdhsa_user_sgpr_count 2
  .amdhsa_user_sgpr_kernarg_segment_ptr 1
  .amdhsa_system_sgpr_workgroup_id_x 1
.end_amdhsa_kernel"""

hdr=open(f"cdna_kernels/{NAME}.s.ref").read().split("; Override launch")[0]
out=[hdr.rstrip(),
 "; @launch kernel=ln_kernel grid=(512,1,1) block=(256,1,1) lds=0",
 "; @launch kernel=stagea_kernel grid=(672,1,1) block=(256,1,1) lds=147456",
 "; @launch kernel=stageb_kernel grid=(256,1,1) block=(256,1,1) lds=147456",
 "; @launch kernel=final_kernel grid=(1152,1,1) block=(256,1,1) lds=0",
 '.amdgcn_target "amdgcn-amd-amdhsa--gfx950"', ".text"]
k0(); k1(); k2(); k3()
out+=L
out+=[kd("ln_kernel",64),kd("stagea_kernel",256),kd("stageb_kernel",256),kd("final_kernel",64)]
open(f"cdna_kernels/{NAME}.s","w").write("\n".join(out)+"\n")
```
